```python
import torch

def _softmax(x, axis=-1):
    return torch.softmax(x, dim=axis)

def _gelu(x):
    return torch.nn.functional.gelu(x, approximate='tanh')

def _silu(x):
    return torch.nn.functional.silu(x)

def _sigmoid(x):
    return torch.sigmoid(x)

def _layernorm(x, axis=-1, eps=1e-05):
    m = x.mean(dim=axis, keepdim=True)
    v = x.var(dim=axis, keepdim=True, unbiased=False)
    return (x - m) / torch.sqrt(v + eps)

def _scatter_add(tgt, idx, src, axis=0):
    return tgt.clone().index_add_(axis, idx, src)

def _segment_sum(src, seg, n):
    out = torch.zeros((n,) + src.shape[1:], dtype=src.dtype)
    return out.index_add_(0, seg, src)

def _pad(x, pw):
    flat = tuple((v for pair in reversed(pw) for v in pair))
    return torch.nn.functional.pad(x, flat)
kernel_name = 'sequential_preLN__ssm_conv_h3__mixer_gmlp__prompt'

def setup_inputs():

    _w = lambda a: (lambda t: t.to(torch.bfloat16) if t.is_floating_point() else t)(torch.as_tensor(a))

    def _A_setup():
        B, S, D = (1, 2048, 512)
        ks = 4
        return {'q': _w((lambda *s: torch.randn(*s, dtype=torch.bfloat16) * 0.05)(B, S, D)), 'k': _w((lambda *s: torch.randn(*s, dtype=torch.bfloat16) * 0.4)(B, S, D)), 'v': _w((lambda *s: torch.randn(*s, dtype=torch.bfloat16) * 0.4)(B, S, D)), 'shift_k': _w((lambda *s: torch.randn(*s, dtype=torch.bfloat16) * 0.4)(D, ks) * 0.5), 'ssm_k': _w((lambda *s: torch.randn(*s, dtype=torch.bfloat16) * 0.4)(D, S) * (1.0 / S ** 0.5)), 'ssm_D': _w((lambda *s: torch.randn(*s, dtype=torch.bfloat16) * 0.4)(D))}
    _A_in = _A_setup()

    def _B_setup():
        B, S, D, F = (1, 2048, 512, 1792)
        Fh = F // 2
        return {'x': _w((lambda *s: torch.randn(*s, dtype=torch.bfloat16) * 0.05)(B, S, D)), 'w_in': _w((lambda *s: torch.randn(*s, dtype=torch.bfloat16) * 0.4)(D, 2 * Fh)), 'w_sp': _w(0.01 * (lambda *s: torch.randn(*s, dtype=torch.bfloat16) * 0.4)(S, S)), 'b_sp': _w(1.0 + 0.01 * (lambda *s: torch.randn(*s, dtype=torch.bfloat16) * 0.05)(S)), 'w_out': _w((lambda *s: torch.randn(*s, dtype=torch.bfloat16) * 0.05)(Fh, D))}
    _B_in = _B_setup()
    return {'A_q': _A_in['q'], 'A_k': _A_in['k'], 'A_v': _A_in['v'], 'A_shift_k': _A_in['shift_k'], 'A_ssm_k': _A_in['ssm_k'], 'A_ssm_D': _A_in['ssm_D'], 'B_x': _B_in['x'], 'B_w_in': _B_in['w_in'], 'B_w_sp': _B_in['w_sp'], 'B_b_sp': _B_in['b_sp'], 'B_w_out': _B_in['w_out']}

def reference(A_q, A_k, A_v, A_shift_k, A_ssm_k, A_ssm_D, B_x, B_w_in, B_w_sp, B_b_sp, B_w_out):

    def _A_ref(q, k, v, shift_k, ssm_k, ssm_D):
        B, S, D = q.shape
        ks = shift_k.shape[-1]
        k_pad = _pad(k, ((0, 0), (ks - 1, 0), (0, 0)))
        k_shift = torch.zeros_like(k)
        for t in range(ks):
            k_shift = k_shift + k_pad[:, t:t + S, :] * shift_k[:, ks - 1 - t][None, None, :]
        kv = k_shift * v
        L = 2 * S
        kv_pad = _pad(kv, ((0, 0), (0, S), (0, 0)))
        kf_pad = _pad(ssm_k, ((0, 0), (0, S)))
        kv_f = (lambda x, axes=(-2, -1): torch.fft.rfft2(x.float(), dim=axes))(kv_pad[:, None, :, :], axes=(1, 2))
        kf_f = (lambda x, axes=(-2, -1): torch.fft.rfft2(x.float(), dim=axes))(kf_pad[:, None, :], axes=(1, 2))
        kf_f = (lambda x, *d: x.permute(*d))(kf_f, 1, 2, 0)
        y_f = kv_f * kf_f[None, :, :, :]
        y = (lambda x, s, axes=(-2, -1): torch.fft.irfft2(x, s=s, dim=axes).to(torch.bfloat16))(y_f, (1, L), axes=(1, 2))[:, 0, :S, :]
        y = y + kv * ssm_D[None, None, :]
        return q * y

    def _B_ref(x, w_in, w_sp, b_sp, w_out):
        B, S, D = x.shape
        F = w_in.shape[-1]
        Fh = F // 2
        z = _gelu(torch.einsum('bsd,df->bsf', x, w_in))
        z1 = z[..., :Fh].clone()
        z2 = _layernorm(z[..., Fh:], axis=-1)
        g = torch.einsum('ts,bsf->btf', w_sp, z2) + b_sp[None, :, None]
        return torch.einsum('bsf,fd->bsd', z1 * g, w_out)
    x = A_q
    h = x + _A_ref(_layernorm(x, axis=-1), A_k, A_v, A_shift_k, A_ssm_k, A_ssm_D)
    h2 = h + _B_ref(_layernorm(h, axis=-1), B_w_in, B_w_sp, B_b_sp, B_w_out)
    return h2
```

```python
import re

class Asm:
    def __init__(self):
        self.lines = []
    def __call__(self, s):
        for l in s.split("\n"):
            l = l.rstrip()
            if l.strip():
                self.lines.append(l if l.strip().endswith(":") or l.startswith(".") or l.startswith(";") else "    " + l.strip())
        return self
    def label(self, name):
        self.lines.append(name + ":")
    def nop(self, n):
        while n > 0:
            k = min(n, 16)
            self.lines.append(f"    s_nop {k-1}")
            n -= k
    def c(self, text):
        self.lines.append("    ; " + text)
    def text(self):
        return "\n".join(self.lines) + "\n"

def v(n, w=1):
    return f"v{n}" if w == 1 else f"v[{n}:{n+w-1}]"
def a(n, w=1):
    return f"a{n}" if w == 1 else f"a[{n}:{n+w-1}]"
def s(n, w=1):
    return f"s{n}" if w == 1 else f"s[{n}:{n+w-1}]"

REG = re.compile(r"^(-?)(\|?)([vas])(\d+|\[(\d+):(\d+)\])\|?$")
def regs_of(tok):
    tok = tok.strip()
    tok = re.sub(r"^abs\((.*)\)$", r"\1", tok.lstrip("-"))
    if tok in ("vcc", "vcc_lo", "vcc_hi"): return {"vcc"}
    if tok in ("exec", "exec_lo", "exec_hi"): return {"exec"}
    if tok == "m0": return {"m0"}
    if tok == "scc": return {"scc"}
    m = re.match(r"^([vas])(\d+)$", tok)
    if m: return {m.group(1) + m.group(2)}
    m = re.match(r"^([vas])\[(\d+):(\d+)\]$", tok)
    if m: return {m.group(1) + str(i) for i in range(int(m.group(2)), int(m.group(3)) + 1)}
    return set()

TRANS = ("v_exp_f32", "v_log_f32", "v_rcp_f32", "v_rsq_f32", "v_sqrt_f32", "v_sin_f32", "v_cos_f32")
def split_ops(rest):
    out, depth, cur = [], 0, ""
    for ch in rest:
        if ch == "[": depth += 1
        if ch == "]": depth -= 1
        if ch == "," and depth == 0:
            out.append(cur.strip()); cur = ""
        else:
            cur += ch
    if cur.strip(): out.append(cur.strip())
    return out

class Ins:
    pass
def parse(line):
    t = line.split(";")[0].strip()
    if not t or t.startswith(".") or t.endswith(":"): return None
    p = t.split(None, 1)
    i = Ins(); i.text = t; i.op = p[0]
    ops = split_ops(p[1]) if len(p) > 1 else []
    toks, mods = [], []
    for k, o in enumerate(ops):
        parts = o.split()
        toks.append(parts[0]); mods += parts[1:]
    i.toks = toks; i.mods = mods
    op = i.op
    i.cls = "other"; i.w = set(); i.r = set(); i.ws = 1
    R = lambda idxs: set().union(*[regs_of(toks[k]) for k in idxs if k < len(toks)]) if idxs else set()
    n = len(toks)
    if op == "s_nop":
        i.cls = "nop"; i.ws = int(toks[0], 0) + 1
    elif op.startswith("v_mfma"):
        i.cls = "mfma"; i.w = R([0]); i.a = R([1]); i.b = R([2]); i.c = R([3]); i.r = i.a | i.b | i.c
        i.passes = 8 if "32x32x16" in op else 4 if "16x16x32" in op else None
        assert i.passes, op
    elif op.startswith("v_"):
        i.cls = "valu"
        if op.startswith("v_cmp"):
            i.w = R([0]); i.r = R(range(1, n))
            if op.startswith("v_cmpx"): i.w |= {"exec"}
        elif op.startswith("v_permlane32_swap") or op.startswith("v_permlane16_swap"):
            i.w = R([0, 1]); i.r = R([0, 1]); i.perm = True
        elif re.match(r"v_(add|sub|subrev)_co_u32", op):
            i.w = R([0, 1]); i.r = R(range(2, n))
        elif re.match(r"v_(addc|subb|subbrev)_co_u32", op):
            i.w = R([0, 1]); i.r = R(range(2, n))
        else:
            i.w = R([0]); i.r = R(range(1, n))
            if op.startswith(("v_fmac", "v_dot2c", "v_writelane", "v_pk_fmac")) or "_dpp" in op: i.r |= R([0])
            if op.startswith("v_cndmask") and n == 3: i.r |= {"vcc"}
        i.trans = op.replace("_e32", "").replace("_e64", "") in TRANS
        i.dpp = "_dpp" in op or any(m.startswith(("row_", "quad_perm", "wave_")) for m in mods)
        i.rdlane = op.startswith(("v_readlane", "v_readfirstlane"))
    elif op.startswith(("buffer_", "global_")):
        i.cls = "vmem"
        lds = "lds" in mods
        if "load" in op and not lds:
            i.w = R([0]); i.r = R(range(1, n))
        elif "atomic" in op and "sc0" in mods:
            i.w = R([0]); i.r = R(range(0, n))
        else:
            i.r = R(range(0, n))
        if lds: i.r |= {"m0"}
        i.lds = lds
        i.store = "store" in op
        i.wide = i.store and ("x4" in op or "x3" in op)
        if i.store:
            i.data = R([0]) if op.startswith("buffer_") else R([1])
    elif op.startswith("ds_"):
        i.cls = "ds"
        if op.startswith(("ds_read", "ds_bpermute", "ds_permute", "ds_swizzle")):
            i.w = R([0]); i.r = R(range(1, n))
        else:
            i.r = R(range(0, n))
    elif op.startswith("s_"):
        i.cls = "salu"
        if op.startswith(("s_cmp", "s_cbranch", "s_branch", "s_waitcnt", "s_barrier", "s_endpgm", "s_setprio", "s_sleep", "s_bitcmp")):
            i.r = R(range(0, n))
        elif op.startswith(("s_and_saveexec", "s_or_saveexec")):
            i.w = R([0]) | {"exec"}; i.r = R([1]) | {"exec"}
        else:
            i.w = R([0]); i.r = R(range(1, n))
    return i

def lint(text, name=""):
    lines = text.split("\n")
    ins, labels = [], {}
    for ln, l in enumerate(lines):
        t = l.split(";")[0].strip()
        if t.endswith(":"):
            labels[t[:-1]] = len(ins); continue
        i = parse(l)
        if i: i.ln = ln + 1; ins.append(i)
    msgs = []
    def need(p, c):
        n = 0
        isv = lambda S: {r for r in S if r[0] in "va" and r != "vcc"}
        iss = lambda S: {r for r in S if r[0] == "s" or r == "vcc"}
        if p.cls == "valu":
            pv = isv(p.w); ps = iss(p.w)
            if c.cls == "mfma" and pv & isv(c.r): n = max(n, 2)
            if c.cls == "valu":
                if getattr(c, "dpp", False) and pv & isv(c.r): n = max(n, 2)
                if getattr(c, "perm", False) and pv & isv(c.r): n = max(n, 2)
                if getattr(c, "rdlane", False) and pv & isv(c.r): n = max(n, 1)
                if ps & iss(c.r): n = max(n, 4 if getattr(c, "rdlane", False) else 2)
                if getattr(p, "trans", False) and not getattr(c, "trans", False) and pv & (isv(c.r) | isv(c.w)): n = max(n, 1)
                if "exec" in p.w and getattr(c, "dpp", False): n = max(n, 5)
            if c.cls == "vmem" and ps & iss(c.r): n = max(n, 5)
            if c.cls == "mfma" and "exec" in p.w: n = max(n, 4)
        if p.cls == "salu":
            if "m0" in p.w and c.cls == "vmem" and getattr(c, "lds", False): n = max(n, 1)
        if p.cls == "vmem" and getattr(p, "wide", False):
            if c.cls == "valu" and p.data & c.w: n = max(n, 2)
            if c.cls in ("ds", "vmem", "mfma") and p.data & c.w: n = max(n, 1)
        if p.cls == "mfma":
            big = {4: 8, 8: 12}[p.passes]
            if c.cls == "mfma":
                if p.w & c.c:
                    if not (p.w == c.c and p.passes == c.passes): n = max(n, {4: 6, 8: 10}[p.passes])
                if p.w & (c.a | c.b): n = max(n, big)
            elif c.cls in ("valu", "vmem", "ds"):
                if p.w & (c.r | c.w): n = max(n, big)
            if c.cls == "valu" and p.c & c.w: n = max(n, {4: 3, 8: 7}[p.passes])
        return n
    def check_seq(seq):
        for x in range(len(seq)):
            p = seq[x]
            if p.cls in ("nop",): continue
            dist = 0
            for y in range(x + 1, min(len(seq), x + 24)):
                c = seq[y]
                n = need(p, c)
                if n > dist:
                    msgs.append(f"{name}: line {p.ln} [{p.text}] -> line {c.ln} [{c.text}] needs {n} has {dist}")
                dist += c.ws
                if dist >= 21: break
                if c.op in ("s_branch", "s_endpgm"): break
    check_seq(ins)
    for x, i in enumerate(ins):
        if i.op.startswith(("s_cbranch", "s_branch")):
            tgt = i.toks[0]
            if tgt in labels:
                t = labels[tgt]
                check_seq(ins[max(0, x - 22): x + 1][:-1] + [i_ for i_ in [ins[x]]] + ins[t: t + 22]) if i.op != "s_branch" else \
                    check_seq(ins[max(0, x - 22): x] + [parse("s_nop 0")] + ins[t: t + 22])
    return sorted(set(msgs))
```

```python
from asmlib import *
from layout import *

def kernel_head(A, name):
    A.lines.append(f".globl {name}")
    A.lines.append(".p2align 8")
    A.lines.append(f".type {name},@function")
    A.lines.append(f"{name}:")

def kernel_desc(name, nvgpr, nagpr=0, nsgpr=96):
    acc = (nvgpr + 3) // 4 * 4
    total = acc + nagpr if nagpr else nvgpr
    return f""".amdhsa_kernel {name}
  .amdhsa_next_free_vgpr {total}
  .amdhsa_next_free_sgpr {nsgpr}
  .amdhsa_accum_offset {acc}
  .amdhsa_group_segment_fixed_size 0
  .amdhsa_kernarg_size 112
  .amdhsa_user_sgpr_count 2
  .amdhsa_user_sgpr_kernarg_segment_ptr 1
  .amdhsa_system_sgpr_workgroup_id_x 1
  .amdhsa_float_denorm_mode_32 3
.end_amdhsa_kernel
"""

def srd(A, d, base, size, off=0, soff=None):
    if off or soff is not None:
        if off:
            A(f"s_add_u32 s{d}, s{base}, {off}")
            A(f"s_addc_u32 s{d+1}, s{base+1}, 0")
            if soff is not None:
                A(f"s_add_u32 s{d}, s{d}, s{soff}")
                A(f"s_addc_u32 s{d+1}, s{d+1}, 0")
        else:
            A(f"s_add_u32 s{d}, s{base}, s{soff}")
            A(f"s_addc_u32 s{d+1}, s{base+1}, 0")
    else:
        A(f"s_mov_b32 s{d}, s{base}")
        A(f"s_mov_b32 s{d+1}, s{base+1}")
    A(f"s_mov_b32 s{d+2}, {size}")
    A(f"s_mov_b32 s{d+3}, 0x00020000")

def wave_id(A, sdst, vtmp):
    A(f"v_lshrrev_b32 v{vtmp}, 6, v0")
    A("s_nop 0")
    A(f"v_readfirstlane_b32 s{sdst}, v{vtmp}")

def magic_div(d, maxn):
    for sh in range(8, 31):
        m = -(-(1 << sh) // d)
        if m >= (1 << 16): break
        if all((n * m) >> sh == n // d for n in range(maxn + 1)) and maxn * m < (1 << 31):
            return m, sh
    raise ValueError
```

```python
from common import *

def pack_transpose(A, raw, dst, s_lo, s_hi):
    for n in range(4):
        A(f"v_perm_b32 v{dst+n}, v{raw+2*n+1}, v{raw+2*n}, s{s_lo}")
    for n in range(4):
        A(f"v_perm_b32 v{dst+4+n}, v{raw+2*n+1}, v{raw+2*n}, s{s_hi}")

def k0(A):
    name = "k0_kernel"
    kernel_head(A, name)
    A("s_cmp_ge_u32 s2, 592")
    A("s_cbranch_scc1 K0_END")
    A(f"s_load_dwordx2 s[12:13], s[0:1], {A_WS}")
    A("v_and_b32 v1, 31, v0          ; cp")
    A("v_lshrrev_b32 v2, 5, v0       ; rg")
    A("s_mov_b32 s60, 0x05040100")
    A("s_mov_b32 s61, 0x07060302")
    A("s_mov_b32 s62, 0x3f803f80")
    A("s_cmp_ge_u32 s2, 480")
    A("s_cbranch_scc1 K0_O")
    A("s_cmp_ge_u32 s2, 256")
    A("s_cbranch_scc1 K0_W")
    A(f"s_load_dwordx4 s[4:7], s[0:1], {A_Q}")
    A(f"s_load_dwordx4 s[8:11], s[0:1], {A_V}")
    A("s_lshr_b32 s3, s2, 3          ; sb")
    A("s_and_b32 s14, s2, 7          ; db")
    A("s_lshl_b32 s15, s3, 16        ; sb*64*1024")
    A("s_lshl_b32 s48, s14, 7        ; db*128")
    A("s_add_u32 s15, s15, s48")
    A("v_lshlrev_b32 v3, 13, v2      ; rg*8*1024")
    A("v_lshlrev_b32 v4, 2, v1       ; cp*4")
    A("v_add3_u32 v5, v3, v4, s15    ; voff")
    A("v_subrev_u32 v6, 3072, v5")
    A("s_lshl_b32 s49, s14, 9")
    A("v_lshlrev_b32 v7, 4, v1")
    A("v_add_u32 v7, s49, v7")
    wave_id(A, 50, 8)
    A("v_and_b32 v9, 63, v0          ; lane")
    A("s_lshl_b32 s51, s2, 3")
    A("s_lshl_b32 s52, s50, 1")
    A("s_add_u32 s51, s51, s52       ; r0")
    A("s_lshl_b32 s52, s51, 10")
    A("v_lshlrev_b32 v8, 4, v9")
    A("v_add_u32 v8, s52, v8")
    A("s_mov_b32 s53, 4096")
    A("s_waitcnt lgkmcnt(0)")
    srd(A, 16, 4, 2 * MB)
    srd(A, 20, 6, 2 * MB)
    srd(A, 24, 8, 2 * MB)
    srd(A, 28, 10, 4096)
    KR, VR, XR, WR, SA, SB = 10, 21, 29, 40, 44, 48
    for i in range(3):
        A(f"buffer_load_dword v{KR+i}, v6, s[20:23], 0 offen offset:{1024*i}")
    for i in range(8):
        so = "0" if i < 4 else "s53"
        A(f"buffer_load_dword v{KR+3+i}, v5, s[20:23], {so} offen offset:{1024*(i%4)}")
    A(f"buffer_load_dwordx4 v[{WR}:{WR+3}], v7, s[28:31], 0 offen")
    for i in range(8):
        so = "0" if i < 4 else "s53"
        A(f"buffer_load_dword v{VR+i}, v5, s[24:27], {so} offen offset:{1024*(i%4)}")
    for i in range(8):
        so = "0" if i < 4 else "s53"
        A(f"buffer_load_dword v{XR+i}, v5, s[16:19], {so} offen offset:{1024*(i%4)}")
    A(f"buffer_load_dwordx4 v[{SA}:{SA+3}], v8, s[16:19], 0 offen")
    A(f"buffer_load_dwordx4 v[{SB}:{SB+3}], v8, s[16:19], 0 offen offset:1024")
    srd(A, 32, 12, KVR_SZ, KVR_OFF)
    srd(A, 36, 12, XT_SZ, XT_OFF)
    srd(A, 40, 12, STX_SZ, STX_OFF)
    srd(A, 44, 12, XS_SZ, XS_OFF)
    A("v_mov_b32 v52, -1")
    A("v_mov_b32 v53, -1")
    A("v_mov_b32 v54, -1")
    A("v_mov_b32 v55, -1")
    A("s_lshl_b32 s54, s2, 9")
    A("v_lshlrev_b32 v56, 4, v0")
    A("v_add_u32 v56, s54, v56")
    A("v_cmp_gt_u32 vcc, 32, v0")
    A("v_mov_b32 v57, 0x7fffffff")
    A("s_nop 0")
    A("v_cndmask_b32 v56, v57, v56, vcc")
    A("buffer_store_dwordx4 v[52:55], v56, s[44:47], 0 offen")
    A("s_lshl_b32 s55, s14, 6")
    A("v_lshlrev_b32 v57, 1, v1")
    A("v_add_u32 v57, s55, v57        ; d")
    A("v_lshlrev_b32 v57, 12, v57     ; d*4096")
    A("s_lshl_b32 s56, s3, 7          ; sb*64*2")
    A("v_lshlrev_b32 v58, 4, v2       ; rg*16")
    A("v_add_u32 v58, s56, v58        ; 2*s0")
    A("v_add_u32 v59, v57, v58")
    A("v_sub_u32 v58, 4080, v58")
    A("v_add_u32 v58, v57, v58")
    A("v_add_u32 v56, 4096, v59       ; XT c1")
    A("v_add_u32 v57, 4096, v58       ; KVR c1")
    KP, WP, T, VP = 60, 82, 90, 106
    A("s_waitcnt vmcnt(19)")
    for i in range(11):
        A(f"v_lshlrev_b32 v{KP+2*i}, 16, v{KR+i}")
        A(f"v_and_b32 v{KP+2*i+1}, 0xffff0000, v{KR+i}")
    A(f"v_lshlrev_b32 v{WP+0}, 16, v{WR+0}")
    A(f"v_lshlrev_b32 v{WP+1}, 16, v{WR+2}")
    A(f"v_and_b32 v{WP+2}, 0xffff0000, v{WR+0}")
    A(f"v_and_b32 v{WP+3}, 0xffff0000, v{WR+2}")
    A(f"v_lshlrev_b32 v{WP+4}, 16, v{WR+1}")
    A(f"v_lshlrev_b32 v{WP+5}, 16, v{WR+3}")
    A(f"v_and_b32 v{WP+6}, 0xffff0000, v{WR+1}")
    A(f"v_and_b32 v{WP+7}, 0xffff0000, v{WR+3}")
    for i in range(8):
        k = lambda j: v(KP + 2 * (i + 3 - j), 2)
        A(f"v_pk_mul_f32 {v(T+2*i,2)}, {k(0)}, {v(WP,2)}")
        for j in (1, 2, 3):
            A(f"v_pk_fma_f32 {v(T+2*i,2)}, {k(j)}, {v(WP+2*j,2)}, {v(T+2*i,2)}")
    A("s_waitcnt vmcnt(11)")
    for i in range(8):
        A(f"v_lshlrev_b32 v{VP+2*i}, 16, v{VR+i}")
        A(f"v_and_b32 v{VP+2*i+1}, 0xffff0000, v{VR+i}")
    for i in range(8):
        A(f"v_pk_mul_f32 {v(T+2*i,2)}, {v(T+2*i,2)}, {v(VP+2*i,2)}")
    O = 60
    for c in range(2):
        for n in range(4):
            A(f"v_cvt_pk_bf16_f32 v{O+4*c+n}, v{T+2*(7-2*n)+c}, v{T+2*(6-2*n)+c}")
    A(f"buffer_store_dwordx4 v[{O}:{O+3}], v58, s[32:35], 0 offen")
    A(f"buffer_store_dwordx4 v[{O+4}:{O+7}], v57, s[32:35], 0 offen")
    A("s_waitcnt vmcnt(4)")
    pack_transpose(A, XR, 68, 60, 61)
    A("buffer_store_dwordx4 v[68:71], v59, s[36:39], 0 offen")
    A("buffer_store_dwordx4 v[72:75], v56, s[36:39], 0 offen")
    A("s_waitcnt vmcnt(4)")
    for r in range(4):
        A(f"v_mov_b32 v{76+r}, 0")
    for n in range(4):
        A(f"v_dot2c_f32_bf16 v76, s62, v{SA+n}")
        A(f"v_dot2c_f32_bf16 v77, v{SA+n}, v{SA+n}")
        A(f"v_dot2c_f32_bf16 v78, s62, v{SB+n}")
        A(f"v_dot2c_f32_bf16 v79, v{SB+n}, v{SB+n}")
    A("s_nop 2")
    for m in ("row_shr:1 row_mask:0xf", "row_shr:2 row_mask:0xf", "row_shr:4 row_mask:0xf", "row_shr:8 row_mask:0xf",
              "row_bcast:15 row_mask:0xa", "row_bcast:31 row_mask:0xc"):
        for r in range(4):
            A(f"v_add_f32_dpp v{76+r}, v{76+r}, v{76+r} {m} bank_mask:0xf")
    A("s_mov_b32 s57, 0x3b000000      ; 1/512")
    A("s_mov_b32 s58, 0x3727c5ac      ; 1e-5")
    for (s1, s2_, o) in ((76, 77, 80), (78, 79, 81)):
        A(f"v_mul_f32 v{s1}, s57, v{s1}          ; mean")
        A(f"v_mul_f32 v{s2_}, s57, v{s2_}          ; E[x^2]")
        A(f"v_fma_f32 v{s2_}, -v{s1}, v{s1}, v{s2_}  ; var")
        A(f"v_max_f32 v{s2_}, 0, v{s2_}")
        A(f"v_add_f32 v{s2_}, s58, v{s2_}")
        A(f"v_rsq_f32 v{o}, v{s2_}")
    A("s_nop 0")
    A("v_mul_f32 v82, v76, v80")
    A("v_mul_f32 v83, v78, v81")
    A("v_sub_f32 v82, 0, v82")
    A("v_sub_f32 v83, 0, v83")
    A("s_lshl_b32 s52, s51, 2")
    A("v_mov_b32 v84, s52")
    A("v_mov_b32 v85, 0x7fffffff")
    A("v_cmp_eq_u32 vcc, 63, v9")
    A("s_nop 1")
    A("v_cndmask_b32 v84, v85, v84, vcc")
    A("s_mov_b32 s59, 8192")
    A("buffer_store_dwordx2 v[80:81], v84, s[40:43], 0 offen")
    A("buffer_store_dwordx2 v[82:83], v84, s[40:43], s59 offen")
    A("s_endpgm")
    A.label("K0_W")
    A(f"s_load_dwordx2 s[4:5], s[0:1], {A_WIN}")
    A("s_sub_u32 s3, s2, 256")
    m, sh = magic_div(28, 223)
    A(f"s_mul_i32 s14, s3, {m}")
    A(f"s_lshr_b32 s14, s14, {sh}       ; ob")
    A("s_mul_i32 s15, s14, 28")
    A("s_sub_u32 s15, s3, s15          ; cb")
    A(f"s_mul_i32 s48, s14, {64*3584}")
    A("s_lshl_b32 s49, s15, 7")
    A("s_add_u32 s48, s48, s49")
    A(f"v_mul_u32_u24 v3, {8*3584}, v2")
    A("v_lshlrev_b32 v4, 2, v1")
    A("v_add3_u32 v5, v3, v4, s48")
    A("s_mov_b32 s50, 7168")
    A("s_mov_b32 s51, 14336")
    A("s_mov_b32 s52, 21504")
    A("s_waitcnt lgkmcnt(0)")
    srd(A, 16, 4, 512 * 3584)
    for i in range(8):
        so = ["0", "s50", "s51", "s52"][i // 2]
        A(f"buffer_load_dword v{10+i}, v5, s[16:19], {so} offen offset:{3584*(i%2)}")
    srd(A, 20, 12, WIF_SZ, WIF_OFF)
    srd(A, 24, 12, CS_SZ, CS_OFF)
    A("v_lshrrev_b32 v6, 4, v1")
    A("s_lshl_b32 s53, s15, 1")
    A("v_add_u32 v6, s53, v6           ; ft")
    A("v_lshlrev_b32 v6, 15, v6        ; ft*32*1024")
    A("s_lshl_b32 s53, s14, 3")
    A("v_add_u32 v7, s53, v2           ; u")
    A("v_lshrrev_b32 v8, 1, v7")
    A("v_lshlrev_b32 v8, 10, v8        ; ks*1024")
    A("v_and_b32 v7, 1, v7")
    A("v_lshlrev_b32 v7, 9, v7         ; g*512")
    A("v_and_b32 v9, 15, v1")
    A("v_lshlrev_b32 v9, 5, v9         ; 2(cp&15)*16")
    A("v_add3_u32 v6, v6, v8, v7")
    A("v_add_u32 v6, v6, v9")
    A("s_waitcnt vmcnt(0)")
    pack_transpose(A, 10, 20, 60, 61)
    A("buffer_store_dwordx4 v[20:23], v6, s[20:23], 0 offen")
    A("buffer_store_dwordx4 v[24:27], v6, s[20:23], 0 offen offset:16")
    A("v_mov_b32 v28, 0")
    A("v_mov_b32 v29, 0")
    for n in range(4):
        A(f"v_dot2c_f32_bf16 v28, s62, v{20+n}")
        A(f"v_dot2c_f32_bf16 v29, s62, v{24+n}")
    A("s_nop 2")
    A("v_permlane32_swap_b32 v28, v29")
    A("s_nop 1")
    A("v_add_f32 v28, v28, v29")
    wave_id(A, 54, 30)
    A("v_and_b32 v31, 63, v0")
    A("v_lshlrev_b32 v32, 2, v0")
    A("ds_write_b32 v32, v28")
    A("s_waitcnt lgkmcnt(0)")
    A("s_barrier")
    A("s_cmp_eq_u32 s54, 0")
    A("s_cbranch_scc0 K0_END")
    A("ds_read_b32 v33, v32")
    A("ds_read_b32 v34, v32 offset:256")
    A("ds_read_b32 v35, v32 offset:512")
    A("ds_read_b32 v36, v32 offset:768")
    A("v_and_b32 v37, 31, v31")
    A("v_lshlrev_b32 v37, 1, v37")
    A("v_lshrrev_b32 v38, 5, v31")
    A("v_add_u32 v37, v37, v38")
    A("s_lshl_b32 s55, s15, 6")
    A("s_mul_i32 s56, s14, 1792")
    A("s_add_u32 s55, s55, s56")
    A("v_add_u32 v37, s55, v37")
    A("v_lshlrev_b32 v37, 2, v37")
    A("s_waitcnt lgkmcnt(0)")
    A("v_add_f32 v33, v33, v34")
    A("v_add_f32 v35, v35, v36")
    A("v_add_f32 v33, v33, v35")
    A("buffer_store_dword v33, v37, s[24:27], 0 offen")
    A("s_endpgm")
    A.label("K0_O")
    A(f"s_load_dwordx2 s[4:5], s[0:1], {A_WOUT}")
    A("s_sub_u32 s3, s2, 480")
    A("s_and_b32 s15, s3, 7            ; cb")
    A("s_lshr_b32 s14, s3, 3           ; ob (0..13)")
    A("s_lshl_b32 s48, s14, 16         ; ob*64*1024")
    A("s_lshl_b32 s49, s15, 7")
    A("s_add_u32 s48, s48, s49")
    A("v_lshlrev_b32 v3, 13, v2")
    A("v_lshlrev_b32 v4, 2, v1")
    A("v_add3_u32 v5, v3, v4, s48")
    A("s_mov_b32 s50, 4096")
    A("s_waitcnt lgkmcnt(0)")
    srd(A, 16, 4, 896 * 1024)
    for i in range(8):
        so = "0" if i < 4 else "s50"
        A(f"buffer_load_dword v{10+i}, v5, s[16:19], {so} offen offset:{1024*(i%4)}")
    srd(A, 20, 12, WOF_SZ, WOF_OFF)
    A("v_lshrrev_b32 v6, 4, v1")
    A("s_lshl_b32 s53, s15, 1")
    A("v_add_u32 v6, s53, v6           ; dt")
    A(f"v_mul_u32_u24 v6, {56*1024}, v6")
    A("s_lshl_b32 s53, s14, 3")
    A("v_add_u32 v7, s53, v2           ; u")
    A("v_lshrrev_b32 v8, 1, v7")
    A("v_lshlrev_b32 v8, 10, v8")
    A("v_and_b32 v7, 1, v7")
    A("v_lshlrev_b32 v7, 9, v7")
    A("v_and_b32 v9, 15, v1")
    A("v_lshlrev_b32 v9, 5, v9")
    A("v_add3_u32 v6, v6, v8, v7")
    A("v_add_u32 v6, v6, v9")
    A("s_waitcnt vmcnt(0)")
    pack_transpose(A, 10, 20, 60, 61)
    A("buffer_store_dwordx4 v[20:23], v6, s[20:23], 0 offen")
    A("buffer_store_dwordx4 v[24:27], v6, s[20:23], 0 offen offset:16")
    A.label("K0_END")
    A("s_endpgm")
    return name, kernel_desc(name, 128), "grid=(592,1,1) block=(256,1,1) lds=1024"
```

```python
from common import *

CHSZ = 27136; ACOPY = 4160; VB0 = 16640; VB1 = VB0 + 5152; EX = 2 * CHSZ; K1_LDS = EX + 16384

def k1(A):
    name = "k1_kernel"
    kernel_head(A, name)
    A("s_cmp_ge_u32 s2, 256")
    A("s_cbranch_scc1 K1_END")
    A(f"s_load_dwordx4 s[4:7], s[0:1], {A_SSM}")
    A(f"s_load_dwordx2 s[12:13], s[0:1], {A_WS}")
    wave_id(A, 50, 1)
    A("v_and_b32 v2, 63, v0            ; lane")
    A("s_nop 1")
    A("s_lshr_b32 s51, s50, 1          ; ch")
    A("s_and_b32 s52, s50, 1           ; p = hf")
    A("s_lshl_b32 s53, s2, 1")
    A("s_add_u32 s53, s53, s51         ; d")
    A("s_lshl_b32 s54, s53, 12         ; d*4096")
    A(f"s_mul_i32 s55, s53, {HT_PITCH}")
    A(f"s_mul_i32 s56, s51, {CHSZ}       ; CB")
    A("s_lshl_b32 s57, s2, 2")
    A("s_waitcnt lgkmcnt(0)")
    A("s_load_dword s58, s[6:7], s57    ; D pair")
    srd(A, 16, 4, 4096, 0, 54)
    srd(A, 20, 12, 4096, KVR_OFF, 54) if KVR_OFF else srd(A, 20, 12, 4096, 0, 54)
    srd(A, 24, 12, 4096, XT_OFF, 54)
    srd(A, 28, 12, STX_SZ, STX_OFF)
    srd(A, 32, 12, 4096, HT_OFF, 55)
    m, sh = magic_div(260, 1100)
    A("s_lshl_b32 s59, s52, 6")
    A("v_add_u32 v3, s59, v2           ; Q0 = lane + 64 p")
    A("s_mov_b32 s60, -54")
    A("s_mov_b32 s61, -4158")
    A("s_lshl_b32 s62, s52, 10")
    A("s_add_u32 s62, s62, s56")
    def a_dma(n):
        A(f"v_add_u32 v4, {128*n}, v3")
        A(f"v_mul_u32_u24 v5, {m}, v4")
        A(f"v_lshrrev_b32 v5, {sh}, v5      ; j")
        A("v_lshl_add_u32 v4, v4, 4, s60")
        A("v_mad_i32_i24 v4, v5, s61, v4")
        A(f"s_add_u32 m0, s62, {2048*n}")
        A("s_nop 0")
        A("buffer_load_dwordx4 v4, s[16:19], 0 offen lds")
    for n in range(8):
        a_dma(n)
    A("s_cmp_eq_u32 s52, 0")
    A("s_cbranch_scc0 K1_NOLAST")
    A("v_cmp_gt_u32 vcc, 16, v2")
    A("s_and_saveexec_b64 s[64:65], vcc")
    a_dma(8)
    A("s_mov_b64 exec, s[64:65]")
    A.label("K1_NOLAST")
    A("s_xor_b32 s63, s52, 1")
    A("s_lshl_b32 s63, s63, 3")
    A("v_lshlrev_b32 v6, 4, v2")
    A("v_add_u32 v6, s63, v6")
    A("v_add_u32 v7, 4096, v6")
    A("s_mul_i32 s66, s52, 5152")
    A("s_add_u32 s66, s66, s56")
    A(f"s_add_u32 s66, s66, {VB0}")
    A("s_mov_b32 m0, s66")
    A("s_nop 0")
    for i in range(4):
        A(f"buffer_load_dwordx4 v6, s[20:23], 0 offen offset:{1024*i} lds")
    A("s_add_u32 m0, s66, 4096")
    A("s_nop 0")
    A("buffer_load_dwordx4 v7, s[20:23], 0 offen lds")
    A("v_lshrrev_b32 v8, 3, v2")
    A("v_and_b32 v8, 3, v8             ; j")
    A("v_and_b32 v9, 7, v2             ; e")
    A("v_add_u32 v10, v8, v9")
    A("v_subrev_u32 v10, 3, v10")
    A("v_lshlrev_b32 v10, 1, v10")
    A("buffer_load_ushort v11, v10, s[16:19], 0 offen")
    A(f"v_mul_u32_u24 v8, {ACOPY}, v8")
    A("v_lshlrev_b32 v9, 1, v9")
    A("v_add3_u32 v12, v8, v9, s56")
    A("v_add_u32 v12, 48, v12")
    A("v_and_b32 v13, 15, v2            ; n (= m)")
    A("v_lshrrev_b32 v14, 4, v2         ; hq (= g)")
    A("v_lshrrev_b32 v15, 1, v13")
    A("v_lshlrev_b32 v15, 5, v15")
    A("v_lshlrev_b32 v16, 3, v14")
    A("v_and_b32 v17, 1, v13")
    A("v_lshlrev_b32 v18, 2, v17")
    A("v_add3_u32 v15, v15, v16, v18    ; sigma")
    A("s_lshl_b32 s67, s52, 11")
    A("v_lshlrev_b32 v19, 1, v15")
    A("v_add_u32 v20, s67, v19")
    A("v_lshlrev_b32 v21, 1, v20")
    XR, AR, BR = 32, 40, 224
    for t in range(4):
        A(f"buffer_load_dwordx2 v[{XR+2*t}:{XR+2*t+1}], v20, s[24:27], 0 offen offset:{512*t}")
    for t in range(4):
        A(f"buffer_load_dwordx4 v[{AR+4*t}:{AR+4*t+3}], v21, s[28:31], 0 offen offset:{1024*t}")
    A("s_mov_b32 s68, 8192")
    for t in range(4):
        A(f"buffer_load_dwordx4 v[{BR+4*t}:{BR+4*t+3}], v21, s[28:31], s68 offen offset:{1024*t}")
    A("v_and_b32 v22, 3, v13")
    A(f"v_mul_u32_u24 v22, {ACOPY}, v22")
    A("v_lshrrev_b32 v23, 2, v13")
    A("v_add_u32 v23, v23, v14")
    A("v_lshlrev_b32 v23, 4, v23")
    A("s_lshl_b32 s69, s52, 8")
    A("s_add_u32 s69, s69, s56")
    A("v_add3_u32 v22, v22, v23, s69    ; vF")
    A("v_mul_u32_u24 v23, 5152, v17")
    A("v_lshrrev_b32 v24, 1, v13")
    A("v_lshlrev_b32 v24, 6, v24")
    A("v_sub_u32 v23, v23, v24")
    A("v_lshlrev_b32 v24, 4, v14")
    A(f"s_add_u32 s70, s69, {VB0 + 448}")
    A("v_add3_u32 v23, v23, v24, s70    ; vH")
    A(f"s_add_u32 s71, s56, {VB1 + 4088 - 1536}")
    A("v_sub_u32 v24, s71, v20")
    ACC = 64
    for r in range(32):
        A(f"v_mov_b32 v{ACC+r}, 0")
    A("s_waitcnt vmcnt(12)")
    A("s_cmp_eq_u32 s52, 0")
    A("s_cbranch_scc0 K1_NOFIX")
    A("v_cmp_gt_u32 vcc, 32, v2")
    A("s_and_saveexec_b64 s[64:65], vcc")
    A("ds_write_b16 v12, v11")
    A("s_mov_b64 exec, s[64:65]")
    A.label("K1_NOFIX")
    A("s_waitcnt lgkmcnt(0)")
    A("s_barrier")
    FS = [96, 128]; HS = [160, 192]
    def reads(rp, st):
        out = []
        order = [("F", 0)] + [("H", -b) for b in range(8)] + [("F", a_) for a_ in range(1, 8)]
        for kind, idx in order:
            if kind == "F":
                r = FS[st] + 4 * idx
                out.append(f"ds_read_b128 v[{r}:{r+3}], v22 offset:{64*rp + 512*idx}")
            else:
                r = HS[st] + 4 * (-idx)
                out.append(f"ds_read_b128 v[{r}:{r+3}], v23 offset:{64*rp + 512*(idx+7)}")
        return out
    for l in reads(0, 0): A(l)
    for rp in range(4):
        st = rp & 1
        A("s_waitcnt lgkmcnt(0)")
        nxt = reads(rp + 1, st ^ 1) if rp < 3 else []
        cnt = 0
        for a_ in range(8):
            for n_ in range(a_, 8):
                b = n_ - a_
                f = FS[st] + 4 * a_; h = HS[st] + 4 * b; c = ACC + 4 * n_
                A(f"v_mfma_f32_16x16x32_bf16 v[{c}:{c+3}], v[{f}:{f+3}], v[{h}:{h+3}], v[{c}:{c+3}]")
                if cnt < len(nxt): A(nxt[cnt])
                cnt += 1
    A("s_lshl_b32 s72, s50, 12")
    A(f"s_add_u32 s72, s72, {EX}")
    A("v_lshlrev_b32 v25, 4, v2")
    A("v_add_u32 v26, s72, v25")
    A("s_xor_b32 s73, s50, 1")
    A("s_lshl_b32 s73, s73, 12")
    A(f"s_add_u32 s73, s73, {EX}")
    A("v_add_u32 v27, s73, v25")
    A("s_cmp_eq_u32 s52, 0")
    A("s_nop 4")
    A("s_cbranch_scc0 K1_XB")
    for t in range(4):
        A(f"ds_write_b128 v26, v[{ACC+16+4*t}:{ACC+16+4*t+3}] offset:{1024*t}")
    A("s_branch K1_XJ")
    A.label("K1_XB")
    for t in range(4):
        A(f"ds_write_b128 v26, v[{ACC+4*t}:{ACC+4*t+3}] offset:{1024*t}")
    A.label("K1_XJ")
    A("s_waitcnt lgkmcnt(0)")
    A("s_barrier")
    R = 96; U = 112; Y = 128
    for t in range(4):
        A(f"ds_read_b128 v[{R+4*t}:{R+4*t+3}], v27 offset:{1024*t}")
    for t in range(4):
        A(f"ds_read_b64 v[{U+2*t}:{U+2*t+1}], v24 offset:{1536-512*t}")
    A("s_lshl_b32 s74, s58, 16")
    A("s_and_b32 s75, s58, 0xffff0000")
    A("s_cmp_eq_u32 s51, 0")
    A("s_cselect_b32 s74, s74, s75")
    A("s_cmp_eq_u32 s52, 0")
    A("s_waitcnt lgkmcnt(0)")
    A("s_cbranch_scc0 K1_YB")
    for r in range(16):
        A(f"v_add_f32 v{Y+r}, v{ACC+r}, v{R+r}")
    A("s_branch K1_YJ")
    A.label("K1_YB")
    for r in range(16):
        A(f"v_add_f32 v{Y+r}, v{ACC+16+r}, v{R+r}")
    A.label("K1_YJ")
    A("s_waitcnt vmcnt(0)")
    T = 144
    for t in range(4):
        x0, x1 = XR + 2 * t, XR + 2 * t + 1
        u0, u1 = U + 2 * t, U + 2 * t + 1
        X = T; UU = T + 4
        A(f"v_lshlrev_b32 v{X+0}, 16, v{x0}")
        A(f"v_and_b32 v{X+1}, 0xffff0000, v{x0}")
        A(f"v_lshlrev_b32 v{X+2}, 16, v{x1}")
        A(f"v_and_b32 v{X+3}, 0xffff0000, v{x1}")
        A(f"v_and_b32 v{UU+0}, 0xffff0000, v{u1}")
        A(f"v_lshlrev_b32 v{UU+1}, 16, v{u1}")
        A(f"v_and_b32 v{UU+2}, 0xffff0000, v{u0}")
        A(f"v_lshlrev_b32 v{UU+3}, 16, v{u0}")
        for r in range(4):
            A(f"v_fma_f32 v{Y+4*t+r}, v{UU+r}, s74, v{Y+4*t+r}      ; y + kv*D")
        for r in range(4):
            A(f"v_fma_f32 v{UU+r}, v{X+r}, v{AR+4*t+r}, v{BR+4*t+r}   ; q")
        for r in range(4):
            A(f"v_fma_f32 v{Y+4*t+r}, v{UU+r}, v{Y+4*t+r}, v{X+r}     ; h")
        o = T + 8 + 2 * t
        A(f"v_cvt_pk_bf16_f32 v{o}, v{Y+4*t+0}, v{Y+4*t+1}")
        A(f"v_cvt_pk_bf16_f32 v{o+1}, v{Y+4*t+2}, v{Y+4*t+3}")
        A(f"buffer_store_dwordx2 v[{o}:{o+1}], v20, s[32:35], 0 offen offset:{512*t}")
    A.label("K1_END")
    A("s_endpgm")
    return name, kernel_desc(name, 240), f"grid=(256,1,1) block=(256,1,1) lds={K1_LDS}"
```

```python
from common import *

HTILE = 0; STAT1 = 65536; STAT2 = STAT1 + 512; CSB = STAT2 + 2048; TRB = 69632; K2_LDS = TRB + 16384
assert CSB + 1024 <= TRB and TRB % 4096 == 0

C1 = -2.302208198
C2 = C1 * 0.044715
import struct
def fbits(x): return "0x%08x" % struct.unpack("<I", struct.pack("<f", x))[0]

def gelu16(A, X, T, sc1, sc2):
    for p in range(8):
        A(f"v_pk_mul_f32 {v(T+2*p,2)}, {v(X+2*p,2)}, {v(X+2*p,2)}")
    for p in range(8):
        A(f"v_pk_fma_f32 {v(T+2*p,2)}, {v(T+2*p,2)}, s[{sc2}:{sc2+1}], s[{sc1}:{sc1+1}]" if False else
          f"v_pk_fma_f32 {v(T+2*p,2)}, {v(T+2*p,2)}, v[28:29], v[26:27]")
    for p in range(8):
        A(f"v_pk_mul_f32 {v(T+2*p,2)}, {v(T+2*p,2)}, {v(X+2*p,2)}")
    for r in range(16):
        A(f"v_exp_f32 v{T+r}, v{T+r}")
    for p in range(8):
        A(f"v_pk_add_f32 {v(T+2*p,2)}, {v(T+2*p,2)}, v[30:31]")
    for r in range(16):
        A(f"v_rcp_f32 v{T+r}, v{T+r}")
    for p in range(8):
        A(f"v_pk_mul_f32 {v(X+2*p,2)}, {v(X+2*p,2)}, {v(T+2*p,2)}")

def k2(A):
    name = "k2_kernel"
    kernel_head(A, name)
    A("s_cmp_ge_u32 s2, 224")
    A("s_cbranch_scc1 K2_END")
    A(f"s_load_dwordx2 s[12:13], s[0:1], {A_WS}")
    wave_id(A, 50, 1)
    A("v_and_b32 v2, 63, v0            ; lane")
    A("s_and_b32 s3, s2, 7")
    A("s_lshr_b32 s4, s2, 3            ; j")
    A("s_and_b32 s5, s4, 3")
    A("s_lshl_b32 s3, s3, 2")
    A("s_add_u32 s51, s3, s5           ; rb")
    A("s_lshr_b32 s52, s4, 2           ; cg")
    A("s_lshl_b32 s53, s52, 2")
    A("s_add_u32 s53, s53, s50")
    A("s_add_u32 s54, s53, 28          ; ft2")
    A("s_lshl_b32 s55, s51, 7")
    A("s_lshl_b32 s56, s54, 15         ; ft2*32768")
    A("s_lshl_b32 s57, s53, 15         ; ft1*32768")
    A("s_and_b32 s58, s50, 1           ; stA")
    A("s_waitcnt lgkmcnt(0)")
    srd(A, 16, 12, HT_SZ, HT_OFF, 55)
    A(f"s_sub_u32 s18, s18, s55")
    srd(A, 20, 12, 32768, WIF_OFF, 56)
    srd(A, 24, 12, 32768, WIF_OFF, 57)
    srd(A, 28, 12, CS_SZ, CS_OFF)
    A("v_lshrrev_b32 v3, 3, v2")
    A(f"v_mul_u32_u24 v3, {HT_PITCH}, v3")
    A("v_and_b32 v4, 7, v2")
    A("v_lshrrev_b32 v5, 4, v2")
    A("v_and_b32 v5, 1, v5")
    A("v_lshlrev_b32 v5, 2, v5")
    A("v_xor_b32 v4, v4, v5")
    A("v_lshlrev_b32 v4, 4, v4")
    A("v_add_u32 v3, v3, v4             ; vDMA")
    A("v_lshlrev_b32 v4, 4, v2          ; lane*16")
    A(f"s_mul_i32 s59, s50, {8*HT_PITCH}")
    A("s_lshl_b32 s60, s50, 10          ; m0")
    A("s_mov_b32 s61, 0                 ; W soffset")
    for ph in range(4):
        for n in range(4):
            A("s_mov_b32 m0, s60")
            A(f"s_add_u32 s60, s60, 4096")
            A("buffer_load_dwordx4 v3, s[16:19], s59 offen lds")
            A(f"s_add_u32 s59, s59, {32*HT_PITCH}")
        for k in range(8):
            ks = 8 * ph + k
            if k % 4 == 0 and ks > 0: A("s_add_u32 s61, s61, 4096")
            A(f"buffer_load_dwordx4 a[{4*ks}:{4*ks+3}], v4, s[20:23], s61 offen offset:{1024*(k%4)}")
    A("v_and_b32 v5, 31, v2             ; i")
    A("v_lshrrev_b32 v6, 5, v2")
    A(f"v_mul_u32_u24 v7, {4*1792*4}, v6")
    A("v_lshlrev_b32 v8, 2, v5")
    A("v_add_u32 v7, v7, v8")
    A("s_lshl_b32 s62, s53, 7           ; ft1*32*4")
    A("v_add_u32 v7, s62, v7            ; z1 columns")
    A(f"v_add_u32 v8, {896*4}, v7         ; z2 columns")
    CSR = 144
    for n in range(4):
        A(f"s_mov_b32 s63, {n*1792*4}")
        A(f"buffer_load_dword v{CSR+n}, v8, s[28:31], s63 offen")
        A(f"buffer_load_dword v{CSR+4+n}, v7, s[28:31], s63 offen")
    A("v_lshrrev_b32 v9, 4, v2          ; q")
    A("v_and_b32 v10, 15, v2            ; c")
    A("v_lshrrev_b32 v11, 1, v9")
    A("v_lshlrev_b32 v11, 3, v11        ; 8 (q>>1)")
    A("v_lshrrev_b32 v12, 2, v10")
    A("v_add_u32 v11, v11, v12")
    A("v_lshlrev_b32 v11, 7, v11        ; row*128")
    A("v_and_b32 v12, 1, v9")
    A("v_lshlrev_b32 v12, 5, v12        ; 32 (q&1)")
    A("v_and_b32 v13, 3, v10")
    A("v_lshlrev_b32 v13, 3, v13        ; 8 (c&3)")
    A("v_add3_u32 v11, v11, v12, v13")
    A("v_lshrrev_b32 v12, 3, v10        ; (c>>3)&1")
    A("v_xor_b32 v12, s58, v12")
    A("v_lshlrev_b32 v12, 6, v12")
    A("v_add_u32 v14, v11, v12          ; vHA")
    A("v_xor_b32 v15, 64, v14           ; vHB")
    A(f"v_mov_b32 v26, {fbits(C1)}")
    A(f"v_mov_b32 v27, {fbits(C1)}")
    A(f"v_mov_b32 v28, {fbits(C2)}")
    A(f"v_mov_b32 v29, {fbits(C2)}")
    A("v_mov_b32 v30, 1.0")
    A("v_mov_b32 v31, 1.0")
    A("s_mov_b32 s64, 0x3f803f80")
    ACC2, ACC1, HF = 32, 64, 96
    for r in range(64):
        A(f"v_mov_b32 v{32+r}, 0")
    A("v_mov_b32 v16, 0                 ; S1")
    A("v_mov_b32 v17, 0                 ; S2")
    def hreads(ks):
        st = ks & 1
        b = HF + 8 * st
        A(f"ds_read_b64_tr_b16 v[{b}:{b+1}], v14 offset:{2048*ks}")
        A(f"ds_read_b64_tr_b16 v[{b+2}:{b+3}], v14 offset:{2048*ks+512}")
        A(f"ds_read_b64_tr_b16 v[{b+4}:{b+5}], v15 offset:{2048*ks}")
        A(f"ds_read_b64_tr_b16 v[{b+6}:{b+7}], v15 offset:{2048*ks+512}")
    waits = {0: 44, 1: 40, 2: 36, 3: 32}
    def phase_entry(ph):
        A(f"s_waitcnt vmcnt({waits[ph]})")
        A("s_barrier")
        for k in range(8):
            ks = 8 * ph + k
            if k % 4 == 0:
                A(f"s_mov_b32 s61, {1024*ks}")
            A(f"buffer_load_dwordx4 a[{128+4*ks}:{128+4*ks+3}], v4, s[24:27], s61 offen offset:{1024*(k%4)}")
    phase_entry(0)
    hreads(0)
    for ks in range(32):
        if ks + 1 < 32:
            if (ks + 1) % 8 == 0: phase_entry((ks + 1) // 8)
            hreads(ks + 1)
            A("s_waitcnt lgkmcnt(4)")
        else:
            A("s_waitcnt lgkmcnt(0)")
        b = HF + 8 * (ks & 1)
        A(f"v_mfma_f32_32x32x16_bf16 v[{ACC2}:{ACC2+15}], a[{4*ks}:{4*ks+3}], v[{b}:{b+3}], v[{ACC2}:{ACC2+15}]")
        for n in range(4):
            A(f"v_dot2c_f32_bf16 v16, s64, v{b+n}")
            A(f"v_dot2c_f32_bf16 v17, v{b+n}, v{b+n}")
        A(f"v_mfma_f32_32x32x16_bf16 v[{ACC2+16}:{ACC2+31}], a[{4*ks}:{4*ks+3}], v[{b+4}:{b+7}], v[{ACC2+16}:{ACC2+31}]")
    A("s_nop 2")
    A("v_mov_b32 v18, v16")
    A("v_mov_b32 v19, v17")
    A("s_nop 1")
    A("v_permlane32_swap_b32 v16, v18")
    A("v_permlane32_swap_b32 v17, v19")
    A("s_nop 1")
    A("v_add_f32 v16, v16, v18")
    A("v_add_f32 v17, v17, v19")
    A("s_mov_b32 s65, 0x3b000000        ; 1/512")
    A("s_mov_b32 s66, 0x3727c5ac        ; 1e-5")
    A("v_mul_f32 v16, s65, v16          ; mean")
    A("v_mul_f32 v17, s65, v17")
    A("v_fma_f32 v17, -v16, v16, v17")
    A("v_max_f32 v17, 0, v17")
    A("v_add_f32 v17, s66, v17")
    A("v_rsq_f32 v18, v17               ; aA")
    A("s_nop 0")
    A("v_mul_f32 v19, v16, v18")
    A("v_sub_f32 v19, 0, v19            ; bA")
    A("s_lshl_b32 s67, s58, 8")
    A("v_lshlrev_b32 v20, 3, v5         ; i*8")
    A(f"s_add_u32 s67, s67, {STAT1}")
    A("v_add_u32 v21, s67, v20          ; STAT1[stA][i]")
    A("v_xor_b32 v22, 256, v21          ; STAT1[stB][i]")
    A("ds_write_b64 v21, v[18:19]")
    A("s_waitcnt vmcnt(32)")
    A(f"v_add_f32 v{CSR}, v{CSR}, v{CSR+1}")
    A(f"v_add_f32 v{CSR+2}, v{CSR+2}, v{CSR+3}")
    A(f"v_add_f32 v{CSR+4}, v{CSR+4}, v{CSR+5}")
    A(f"v_add_f32 v{CSR+6}, v{CSR+6}, v{CSR+7}")
    A(f"v_add_f32 v{CSR}, v{CSR}, v{CSR+2}")
    A(f"v_add_f32 v{CSR+4}, v{CSR+4}, v{CSR+6}")
    A("s_nop 1")
    A(f"v_permlane32_swap_b32 v{CSR}, v{CSR+4}")
    A("s_nop 1")
    A(f"v_add_f32 v{CSR}, v{CSR}, v{CSR+4}")
    A("s_lshl_b32 s68, s50, 8")
    A(f"s_add_u32 s68, s68, {CSB}")
    A("v_lshlrev_b32 v23, 2, v2")
    A("v_add_u32 v23, s68, v23")
    A(f"ds_write_b32 v23, v{CSR}")
    A("s_waitcnt lgkmcnt(0)")
    A("s_barrier")
    CS2, CS1 = 112, 128
    A("ds_read_b64 v[24:25], v22")
    A("v_lshlrev_b32 v23, 4, v6")
    A("v_add_u32 v23, s68, v23")
    for jj in range(4):
        A(f"ds_read_b128 v[{CS2+4*jj}:{CS2+4*jj+3}], v23 offset:{32*jj}")
    for jj in range(4):
        A(f"ds_read_b128 v[{CS1+4*jj}:{CS1+4*jj+3}], v23 offset:{128+32*jj}")
    A("s_waitcnt lgkmcnt(0)")
    T = 160
    def lnfold(X, CS, a_, b_):
        for r in range(16):
            A(f"v_mul_f32 v{X+r}, v{a_}, v{X+r}")
        for r in range(16):
            A(f"v_fmac_f32 v{X+r}, v{b_}, v{CS+r}")
    lnfold(ACC2, CS2, 18, 19)
    gelu16(A, ACC2, T, 0, 0)
    lnfold(ACC2 + 16, CS2, 24, 25)
    gelu16(A, ACC2 + 16, T, 0, 0)
    for sl, (s1, s2_) in enumerate(((144, 145), (146, 147))):
        X = ACC2 + 16 * sl
        A(f"v_add_f32 v{s1}, v{X}, v{X+1}")
        A(f"v_mul_f32 v{s2_}, v{X}, v{X}")
        A(f"v_fmac_f32 v{s2_}, v{X+1}, v{X+1}")
        for r in range(2, 16):
            A(f"v_add_f32 v{s1}, v{s1}, v{X+r}")
            A(f"v_fmac_f32 v{s2_}, v{X+r}, v{X+r}")
    A("s_nop 1")
    A("v_permlane32_swap_b32 v144, v146")
    A("v_permlane32_swap_b32 v145, v147")
    A("s_nop 1")
    A("v_add_f32 v144, v144, v146")
    A("v_add_f32 v145, v145, v147")
    A("v_xor_b32 v148, s58, v6")
    A("v_lshlrev_b32 v148, 8, v148")
    A("s_lshl_b32 s69, s50, 9")
    A(f"s_add_u32 s69, s69, {STAT2}")
    A("v_add3_u32 v148, v148, v20, s69")
    A("ds_write_b64 v148, v[144:145]")
    A("s_waitcnt lgkmcnt(0)")
    A("s_barrier")
    srd(A, 32, 12, XS_SZ, XS_OFF)
    A("s_lshl_b32 s70, s51, 12          ; rb*8*512")
    A("v_lshlrev_b32 v149, 3, v2")
    A("v_add_u32 v149, s70, v149         ; XS[rb][0][lane]")
    A("s_waitcnt vmcnt(0)")
    A("s_cmp_eq_u32 s50, 0")
    A("s_cbranch_scc0 K2_NOPUB")
    A(f"v_lshlrev_b32 v150, 3, v2")
    A(f"v_add_u32 v150, {STAT2}, v150")
    for w in range(4):
        A(f"ds_read_b64 v[{152+2*w}:{153+2*w}], v150 offset:{512*w}")
    A("s_lshl_b32 s71, s52, 9")
    A("s_waitcnt lgkmcnt(0)")
    A("v_add_f32 v152, v152, v154")
    A("v_add_f32 v153, v153, v155")
    A("v_add_f32 v156, v156, v158")
    A("v_add_f32 v157, v157, v159")
    A("v_add_f32 v152, v152, v156")
    A("v_add_f32 v153, v153, v157")
    A("v_min_u32 v153, 0xfffffffe, v153")
    A("buffer_store_dwordx2 v[152:153], v149, s[32:35], s71 offen sc0 sc1")
    A.label("K2_NOPUB")
    hreads(0)
    for ks in range(32):
        if ks + 1 < 32:
            hreads(ks + 1)
            A("s_waitcnt lgkmcnt(4)")
        else:
            A("s_waitcnt lgkmcnt(0)")
        b = HF + 8 * (ks & 1)
        A(f"v_mfma_f32_32x32x16_bf16 v[{ACC1}:{ACC1+15}], a[{128+4*ks}:{128+4*ks+3}], v[{b}:{b+3}], v[{ACC1}:{ACC1+15}]")
        A(f"v_mfma_f32_32x32x16_bf16 v[{ACC1+16}:{ACC1+31}], a[{128+4*ks}:{128+4*ks+3}], v[{b+4}:{b+7}], v[{ACC1+16}:{ACC1+31}]")
    A("s_nop 11")
    lnfold(ACC1, CS1, 18, 19)
    gelu16(A, ACC1, T, 0, 0)
    lnfold(ACC1 + 16, CS1, 24, 25)
    gelu16(A, ACC1 + 16, T, 0, 0)
    srd(A, 36, 12, Z1C_SZ, Z1C_OFF)
    for sl in range(2):
        X = ACC1 + 16 * sl
        for n in range(8):
            A(f"v_cvt_pk_bf16_f32 v{T+8*sl+n}, v{X+2*n}, v{X+2*n+1}")
    A("s_lshl_b32 s72, s51, 1")
    A("s_add_u32 s73, s72, s58           ; ttA")
    A("s_xor_b32 s74, s58, 1")
    A("s_add_u32 s74, s72, s74           ; ttB")
    for sreg in (73, 74):
        A(f"s_mul_i32 s{sreg}, s{sreg}, 28")
        A(f"s_add_u32 s{sreg}, s{sreg}, s53")
        A(f"s_lshl_b32 s{sreg}, s{sreg}, 11")
    for sl, sreg in enumerate((73, 74)):
        A(f"buffer_store_dwordx4 v[{T+8*sl}:{T+8*sl+3}], v4, s[36:39], s{sreg} offen")
        A(f"buffer_store_dwordx4 v[{T+8*sl+4}:{T+8*sl+7}], v4, s[36:39], s{sreg} offen offset:1024")
    P = 176
    A("s_mov_b32 s75, 0")
    A.label("K2_POLL")
    for c in range(7):
        A(f"buffer_load_dwordx2 v[{P+2*c}:{P+2*c+1}], v149, s[32:35], 0 offen offset:{512*c} sc0 sc1")
    A("s_waitcnt vmcnt(0)")
    A(f"v_max_u32 v{P+14}, v{P+1}, v{P+3}")
    A(f"v_max3_u32 v{P+14}, v{P+14}, v{P+5}, v{P+7}")
    A(f"v_max3_u32 v{P+14}, v{P+14}, v{P+9}, v{P+11}")
    A(f"v_max_u32 v{P+14}, v{P+14}, v{P+13}")
    A(f"v_cmp_eq_u32 vcc, -1, v{P+14}")
    A("s_add_u32 s75, s75, 1")
    A("s_cbranch_vccz K2_GOT")
    A("s_cmp_lt_u32 s75, 0x40000")
    A("s_cbranch_scc1 K2_POLL")
    A.label("K2_GOT")
    for c in range(1, 7):
        A(f"v_add_f32 v{P}, v{P}, v{P+2*c}")
        A(f"v_add_f32 v{P+1}, v{P+1}, v{P+2*c+1}")
    A(f"s_mov_b32 s76, {fbits(1.0/896)}")
    A(f"v_mul_f32 v{P}, s76, v{P}           ; mean2")
    A(f"v_mul_f32 v{P+1}, s76, v{P+1}")
    A(f"v_fma_f32 v{P+1}, -v{P}, v{P}, v{P+1}")
    A(f"v_max_f32 v{P+1}, 0, v{P+1}")
    A(f"v_add_f32 v{P+1}, s66, v{P+1}")
    A(f"v_rsq_f32 v{P+2}, v{P+1}            ; r2 (lane = s)")
    A("s_nop 0")
    A(f"v_mul_f32 v{P+3}, v{P}, v{P+2}")
    A(f"v_sub_f32 v{P+3}, 0, v{P+3}          ; m2'")
    A(f"v_mov_b32 v{P+4}, v{P+2}")
    A(f"v_mov_b32 v{P+5}, v{P+3}")
    A("s_nop 1")
    A(f"v_permlane32_swap_b32 v{P+2}, v{P+4}")
    A(f"v_permlane32_swap_b32 v{P+3}, v{P+5}")
    A("s_cmp_eq_u32 s58, 0")
    A("s_cselect_b64 s[78:79], -1, 0")
    A("s_nop 1")
    A(f"v_cndmask_b32 v{P+6}, v{P+4}, v{P+2}, s[78:79]    ; r2 slot A")
    A(f"v_cndmask_b32 v{P+7}, v{P+5}, v{P+3}, s[78:79]    ; m2 slot A")
    A(f"v_cndmask_b32 v{P+8}, v{P+2}, v{P+4}, s[78:79]    ; r2 slot B")
    A(f"v_cndmask_b32 v{P+9}, v{P+3}, v{P+5}, s[78:79]    ; m2 slot B")
    for sl in range(2):
        X = ACC2 + 16 * sl
        for r in range(16):
            A(f"v_fma_f32 v{X+r}, v{X+r}, v{P+6+2*sl}, v{P+7+2*sl}")
        for n in range(8):
            A(f"v_cvt_pk_bf16_f32 v{T+8*sl+n}, v{X+2*n}, v{X+2*n+1}")
    A("s_lshl_b32 s80, s50, 12")
    A(f"s_add_u32 s80, s80, {TRB}")
    A("v_lshrrev_b32 v192, 1, v2")
    A("v_and_b32 v192, 7, v192")
    A("v_xor_b32 v192, v192, v6")
    A("s_lshl_b32 s81, s58, 11")
    A("s_add_u32 s81, s81, s80")
    A("v_lshlrev_b32 v193, 6, v5")
    A("v_add_u32 v193, s81, v193")
    for j in range(4):
        A(f"v_xor_b32 v194, {2*j}, v192")
        A("v_lshlrev_b32 v194, 3, v194")
        A("v_add_u32 v194, v193, v194")
        A("v_xor_b32 v195, 2048, v194")
        A(f"ds_write_b64 v194, v[{T+2*j}:{T+2*j+1}]")
        A(f"ds_write_b64 v195, v[{T+8+2*j}:{T+8+2*j+1}]")
    A("v_lshrrev_b32 v196, 1, v9          ; q>>1")
    A("v_lshlrev_b32 v197, 3, v196")
    A("v_lshrrev_b32 v198, 2, v10")
    A("v_add_u32 v197, v197, v198")
    A("v_lshlrev_b32 v197, 6, v197")
    A("v_add_u32 v197, s80, v197")
    A("v_and_b32 v198, 1, v9")
    A("v_lshlrev_b32 v198, 2, v198")
    A("v_and_b32 v199, 3, v10")
    A("v_add_u32 v198, v198, v199")
    A("v_lshlrev_b32 v196, 2, v196")
    A("v_lshrrev_b32 v199, 3, v10")
    A("v_add_u32 v196, v196, v199         ; 4 (q>>1) + (c>>3)")
    A("v_xor_b32 v200, v198, v196")
    A("v_lshlrev_b32 v200, 3, v200")
    A("v_add_u32 v200, v197, v200          ; rho = 0")
    A("v_add_u32 v196, 2, v196")
    A("v_and_b32 v196, 7, v196")
    A("v_xor_b32 v201, v198, v196")
    A("v_lshlrev_b32 v201, 3, v201")
    A("v_add_u32 v201, v197, v201")
    A("v_add_u32 v201, 256, v201           ; rho = 1")
    A("s_waitcnt lgkmcnt(0)")
    F = 208
    for k in range(4):
        A(f"ds_read_b64_tr_b16 v[{F+4*k}:{F+4*k+1}], v200 offset:{1024*k}")
        A(f"ds_read_b64_tr_b16 v[{F+4*k+2}:{F+4*k+3}], v201 offset:{1024*k}")
    srd(A, 40, 12, Z2F_SZ, Z2F_OFF)
    A("s_lshl_b32 s82, s53, 7            ; (4cg+w)*128")
    A("s_lshl_b32 s83, s51, 2")
    A("s_add_u32 s82, s82, s83")
    A("s_lshl_b32 s82, s82, 10")
    A("s_waitcnt lgkmcnt(0)")
    for k in range(4):
        A(f"buffer_store_dwordx4 v[{F+4*k}:{F+4*k+3}], v4, s[40:43], s82 offen offset:{1024*k}")
    A.label("K2_END")
    A("s_endpgm")
    return name, kernel_desc(name, 224, 256), f"grid=(224,1,1) block=(256,1,1) lds={K2_LDS}"
```

```python
from common import *

NST = 8
K3_LDS = 98304

def k3(A):
    name = "k3_kernel"
    kernel_head(A, name)
    A("s_cmp_ge_u32 s2, 224")
    A("s_cbranch_scc1 K3_END")
    A(f"s_load_dwordx4 s[4:7], s[0:1], {A_WSP}")
    A(f"s_load_dwordx2 s[12:13], s[0:1], {A_WS}")
    wave_id(A, 50, 1)
    A("v_and_b32 v2, 63, v0            ; lane")
    A("s_and_b32 s3, s2, 7")
    A("s_lshr_b32 s8, s2, 3            ; j")
    A("s_and_b32 s9, s8, 3")
    A("s_lshl_b32 s3, s3, 2")
    A("s_add_u32 s51, s3, s9           ; rb")
    A("s_lshr_b32 s52, s8, 2           ; cg")
    A("s_lshl_b32 s53, s52, 2")
    A("s_add_u32 s53, s53, s50")
    A("s_lshl_b32 s54, s51, 18         ; rb*64*4096")
    A("s_lshl_b32 s55, s53, 17         ; ft*128*1024")
    A("s_waitcnt lgkmcnt(0)")
    srd(A, 16, 4, 64 * 4096, 0, 54)
    srd(A, 20, 12, 131072, Z2F_OFF, 55)
    srd(A, 24, 6, 4096)
    srd(A, 28, 12, Z1C_SZ, Z1C_OFF)
    srd(A, 32, 12, PF_SZ, PF_OFF)
    A("v_lshrrev_b32 v3, 3, v2")
    A("v_lshrrev_b32 v4, 1, v3")
    A("v_and_b32 v5, 7, v2")
    A("v_xor_b32 v6, v5, v4")
    A("v_lshlrev_b32 v6, 4, v6")
    A("s_lshl_b32 s56, s50, 16")
    A("v_lshlrev_b32 v7, 12, v3")
    A("v_add3_u32 v8, v7, v6, s56        ; vD0 (i = 2w)")
    A("v_xor_b32 v9, 64, v8              ; chunk ^ 4")
    A("v_add_u32 v9, 0x8000, v9")
    A("v_lshlrev_b32 v10, 4, v2          ; lane*16")
    A("v_and_b32 v11, 31, v2              ; col")
    A("v_lshrrev_b32 v12, 5, v2           ; g / hq")
    A("v_lshrrev_b32 v13, 1, v11")
    A("v_and_b32 v13, 7, v13              ; (row>>1)&7")
    A("v_xor_b32 v13, v13, v12            ; x ^ g")
    A("v_lshlrev_b32 v14, 7, v11          ; row*128")
    for u in range(4):
        A(f"v_xor_b32 v15, {2*u}, v13")
        A("v_lshlrev_b32 v15, 4, v15")
        A(f"v_add_u32 v{16+u}, v14, v15      ; step {u}")
    A("s_lshl_b32 s57, s51, 7")
    A("v_lshlrev_b32 v20, 1, v11")
    A("v_add_u32 v20, s57, v20")
    A("buffer_load_ushort v21, v20, s[24:27], 0 offen")
    A("buffer_load_ushort v22, v20, s[24:27], 0 offen offset:64")
    Z1 = 24
    A("s_lshl_b32 s58, s51, 1")
    A("s_mul_i32 s58, s58, 28")
    A("s_add_u32 s58, s58, s53")
    A("s_lshl_b32 s58, s58, 11")
    A(f"s_add_u32 s59, s58, {28*2048}")
    for tt, sr in enumerate((58, 59)):
        A(f"buffer_load_dwordx4 v[{Z1+8*tt}:{Z1+8*tt+3}], v10, s[28:31], s{sr} offen")
        A(f"buffer_load_dwordx4 v[{Z1+8*tt+4}:{Z1+8*tt+7}], v10, s[28:31], s{sr} offen offset:1024")
    ACC = 64; BF = 96
    for r in range(32):
        A(f"v_mov_b32 v{ACC+r}, 0")
    A("s_lshl_b32 s60, s50, 11")
    A("s_mov_b32 s61, 0")
    A("s_mov_b32 s62, 0")
    def issue(slot):
        A(f"s_add_u32 m0, s60, {8192*slot}")
        A("s_nop 0")
        A("buffer_load_dwordx4 v8, s[16:19], s61 offen lds")
        A(f"s_add_u32 m0, s60, {8192*slot+1024}")
        A("s_add_u32 s63, s61, 128")
        A("buffer_load_dwordx4 v9, s[16:19], s61 offen lds")
        for u in range(4):
            r = 16 * slot + 4 * u
            A(f"buffer_load_dwordx4 a[{r}:{r+3}], v10, s[20:23], s62 offen offset:{1024*u}")
        A("s_mov_b32 s61, s63")
        A("s_add_u32 s62, s62, 4096")
    for sl in range(NST - 1):
        issue(sl)
    def stage(sl, do_issue, wait):
        A(f"s_waitcnt vmcnt({wait})")
        A("s_barrier")
        def rd(u):
            b = BF + 8 * (u & 1)
            A(f"ds_read_b128 v[{b}:{b+3}], v{16+u} offset:{8192*sl}")
            A(f"ds_read_b128 v[{b+4}:{b+7}], v{16+u} offset:{8192*sl+4096}")
        rd(0)
        rd(1)
        if do_issue: issue((sl + NST - 1) % NST)
        for u in range(4):
            A("s_waitcnt lgkmcnt(2)" if u < 3 else "s_waitcnt lgkmcnt(0)")
            b = BF + 8 * (u & 1); r = 16 * sl + 4 * u
            A(f"v_mfma_f32_32x32x16_bf16 v[{ACC}:{ACC+15}], a[{r}:{r+3}], v[{b}:{b+3}], v[{ACC}:{ACC+15}]")
            A(f"v_mfma_f32_32x32x16_bf16 v[{ACC+16}:{ACC+31}], a[{r}:{r+3}], v[{b+4}:{b+7}], v[{ACC+16}:{ACC+31}]")
            if u + 2 < 4: rd(u + 2)
    A("s_mov_b32 s64, 0")
    A.label("K3_LOOP")
    for sl in range(NST):
        stage(sl, True, 6 * (NST - 2))
    A(f"s_add_u32 s64, s64, {NST}")
    A(f"s_cmp_lt_u32 s64, {32 - NST}")
    A("s_cbranch_scc1 K3_LOOP")
    for i in range(32 - NST, 32):
        last_issued = min(i + NST - 2, 31)
        stage(i % NST, i + NST - 1 <= 31, 6 * (last_issued - i))
    A("v_lshlrev_b32 v21, 16, v21")
    A("v_lshlrev_b32 v22, 16, v22")
    A("s_nop 8")
    T = 112; O = 128
    for tt in range(2):
        X = ACC + 16 * tt
        for n in range(8):
            A(f"v_lshlrev_b32 v{T+2*n}, 16, v{Z1+8*tt+n}")
            A(f"v_and_b32 v{T+2*n+1}, 0xffff0000, v{Z1+8*tt+n}")
        for r in range(16):
            A(f"v_add_f32 v{X+r}, v{21+tt}, v{X+r}")
        for r in range(16):
            A(f"v_mul_f32 v{X+r}, v{T+r}, v{X+r}")
        for n in range(8):
            A(f"v_cvt_pk_bf16_f32 v{O+8*tt+n}, v{X+2*n}, v{X+2*n+1}")
    A("s_nop 1")
    for tt in range(2):
        b = O + 8 * tt
        for jp in range(2):
            A(f"v_permlane32_swap_b32 v{b+4*jp}, v{b+4*jp+2}")
            A(f"v_permlane32_swap_b32 v{b+4*jp+1}, v{b+4*jp+3}")
    A("s_nop 1")
    A("s_lshl_b32 s65, s51, 1")
    A("s_mul_i32 s65, s65, 56")
    A("s_lshl_b32 s66, s53, 1")
    A("s_add_u32 s65, s65, s66")
    A("s_lshl_b32 s65, s65, 10")
    A(f"s_add_u32 s66, s65, {56*1024}")
    for tt, sr in enumerate((65, 66)):
        b = O + 8 * tt
        A(f"buffer_store_dwordx4 v[{b}:{b+3}], v10, s[32:35], s{sr} offen")
        A(f"buffer_store_dwordx4 v[{b+4}:{b+7}], v10, s[32:35], s{sr} offen offset:1024")
    A.label("K3_END")
    A("s_endpgm")
    return name, kernel_desc(name, 160, 128), f"grid=(224,1,1) block=(256,1,1) lds={K3_LDS}"
```

```python
from common import *

HB = 0; RED = 8192; K4_LDS = RED + 65536 + 16384

def k4(A):
    name = "k4_kernel"
    kernel_head(A, name)
    A("s_cmp_ge_u32 s2, 256")
    A("s_cbranch_scc1 K4_END")
    A(f"s_load_dwordx2 s[4:5], s[0:1], {A_OUT}")
    A(f"s_load_dwordx2 s[12:13], s[0:1], {A_WS}")
    wave_id(A, 50, 1)
    A("v_and_b32 v2, 63, v0            ; lane")
    A("s_and_b32 s3, s2, 7")
    A("s_lshr_b32 s8, s2, 3            ; j")
    A("s_and_b32 s9, s8, 3")
    A("s_lshl_b32 s3, s3, 2")
    A("s_add_u32 s51, s3, s9           ; rb")
    A("s_lshr_b32 s52, s8, 2           ; db")
    A("s_lshr_b32 s53, s50, 1")
    A("s_and_b32 s54, s50, 1")
    A("s_mul_i32 s55, s50, 14336")
    A("s_lshl_b32 s56, s52, 1")
    A("s_add_u32 s57, s56, s53")
    A("s_xor_b32 s58, s53, 1")
    A("s_add_u32 s58, s56, s58")
    A("s_lshl_b32 s59, s51, 1")
    A("s_add_u32 s60, s59, s54")
    A("s_xor_b32 s61, s54, 1")
    A("s_add_u32 s61, s59, s61")
    for r in (57, 58, 60, 61):
        A(f"s_mul_i32 s{r}, s{r}, {56*1024}")
        A(f"s_add_u32 s{r}, s{r}, s55")
    A(f"s_mul_i32 s62, s52, {64*HT_PITCH}")
    A("s_lshl_b32 s63, s51, 7")
    A("s_add_u32 s62, s62, s63")
    A("s_waitcnt lgkmcnt(0)")
    srd(A, 16, 12, WOF_SZ, WOF_OFF)
    srd(A, 20, 12, PF_SZ, PF_OFF)
    srd(A, 24, 12, 63 * HT_PITCH + 128, HT_OFF, 62)
    srd(A, 28, 4, 2048 * 1024)
    A("v_lshlrev_b32 v4, 4, v2          ; lane*16")
    A("v_lshrrev_b32 v3, 3, v2")
    A(f"v_mul_u32_u24 v3, {HT_PITCH}, v3")
    A("v_and_b32 v5, 7, v2")
    A("v_lshrrev_b32 v6, 4, v2")
    A("v_and_b32 v6, 1, v6")
    A("v_lshlrev_b32 v6, 2, v6")
    A("v_xor_b32 v5, v5, v6")
    A("v_lshlrev_b32 v5, 4, v5")
    A("v_add_u32 v3, v3, v5")
    A(f"s_mul_i32 s64, s50, {16*HT_PITCH}")
    A("s_lshl_b32 s65, s50, 11")
    A("s_mov_b32 m0, s65")
    A(f"s_add_u32 s66, s64, {8*HT_PITCH}")
    A("buffer_load_dwordx4 v3, s[24:27], s64 offen lds")
    A("s_add_u32 m0, s65, 1024")
    A("s_nop 0")
    A("buffer_load_dwordx4 v3, s[24:27], s66 offen lds")
    NK = 14
    for k in range(NK):
        if k % 4 == 0 and k > 0:
            for r in (57, 58, 60, 61): A(f"s_add_u32 s{r}, s{r}, 4096")
        o = 1024 * (k % 4)
        A(f"buffer_load_dwordx4 a[{4*k}:{4*k+3}], v4, s[16:19], s57 offen offset:{o}")
        A(f"buffer_load_dwordx4 a[{112+4*k}:{112+4*k+3}], v4, s[20:23], s60 offen offset:{o}")
        A(f"buffer_load_dwordx4 a[{56+4*k}:{56+4*k+3}], v4, s[16:19], s58 offen offset:{o}")
        A(f"buffer_load_dwordx4 a[{168+4*k}:{168+4*k+3}], v4, s[20:23], s61 offen offset:{o}")
    ACC = 32
    for r in range(64):
        A(f"v_mov_b32 v{ACC+r}, 0")
    A("s_lshl_b32 s67, s50, 12")
    A(f"s_add_u32 s67, s67, {RED}")
    for sg in (1, 2, 3):
        A(f"s_xor_b32 s68, s50, {sg}")
        A("s_lshl_b32 s68, s68, 14")
        A("s_add_u32 s68, s68, s67")
        A(f"v_add_u32 v{8+sg}, s68, v4      ; RED[w^{sg}][w]")
        A(f"s_xor_b32 s68, s50, {sg}")
        A("s_lshl_b32 s68, s68, 12")
        A("s_lshl_b32 s69, s50, 14")
        A("s_add_u32 s68, s68, s69")
        A(f"s_add_u32 s68, s68, {RED}")
        A(f"v_add_u32 v{12+sg}, s68, v4     ; RED[w][w^{sg}]")
    A("v_lshrrev_b32 v16, 4, v2          ; q")
    A("v_and_b32 v17, 15, v2             ; c")
    A("v_lshrrev_b32 v18, 1, v16")
    A("v_lshlrev_b32 v18, 2, v18")
    A("v_lshrrev_b32 v19, 2, v17")
    A("v_add_u32 v18, v18, v19")
    A("s_lshl_b32 s70, s53, 5")
    A("v_add_u32 v18, s70, v18")
    A("v_lshlrev_b32 v18, 7, v18")
    A("v_and_b32 v19, 1, v16")
    A("v_lshlrev_b32 v19, 5, v19")
    A("v_and_b32 v20, 3, v17")
    A("v_lshlrev_b32 v20, 3, v20")
    A("v_add3_u32 v18, v18, v19, v20")
    A("v_lshrrev_b32 v19, 3, v17")
    A("v_xor_b32 v19, s54, v19")
    A("v_lshlrev_b32 v19, 6, v19")
    A("v_add_u32 v18, v18, v19          ; vHR")
    A("v_and_b32 v19, 31, v2")
    A("v_lshrrev_b32 v20, 5, v2")
    A("s_lshl_b32 s71, s51, 6")
    A("s_lshl_b32 s72, s54, 5")
    A("s_add_u32 s71, s71, s72")
    A("v_add_u32 v19, s71, v19")
    A("v_lshlrev_b32 v19, 10, v19")
    A("v_lshlrev_b32 v20, 4, v20")
    A("s_lshl_b32 s71, s52, 7")
    A("s_lshl_b32 s72, s53, 6")
    A("s_add_u32 s71, s71, s72")
    A("v_add3_u32 v19, v19, v20, s71     ; vOUT")
    for k in range(NK):
        A(f"s_waitcnt vmcnt({4*(NK-1-k)})")
        a0, a1, b0, b1 = 4 * k, 56 + 4 * k, 112 + 4 * k, 168 + 4 * k
        A(f"v_mfma_f32_32x32x16_bf16 v[{ACC}:{ACC+15}], a[{a0}:{a0+3}], a[{b0}:{b0+3}], v[{ACC}:{ACC+15}]")
        A(f"v_mfma_f32_32x32x16_bf16 v[{ACC+16}:{ACC+31}], a[{a0}:{a0+3}], a[{b1}:{b1+3}], v[{ACC+16}:{ACC+31}]")
        A(f"v_mfma_f32_32x32x16_bf16 v[{ACC+32}:{ACC+47}], a[{a1}:{a1+3}], a[{b0}:{b0+3}], v[{ACC+32}:{ACC+47}]")
        A(f"v_mfma_f32_32x32x16_bf16 v[{ACC+48}:{ACC+63}], a[{a1}:{a1+3}], a[{b1}:{b1+3}], v[{ACC+48}:{ACC+63}]")
    A("s_nop 11")
    for sg in (1, 2, 3):
        for n in range(4):
            r = ACC + 16 * sg + 4 * n
            A(f"ds_write_b128 v{8+sg}, v[{r}:{r+3}] offset:{1024*n}")
    A("s_waitcnt lgkmcnt(0)")
    A("s_barrier")
    R = 96; H = 144
    for sg in (1, 2, 3):
        for n in range(4):
            r = R + 16 * (sg - 1) + 4 * n
            A(f"ds_read_b128 v[{r}:{r+3}], v{12+sg} offset:{1024*n}")
    for j in range(4):
        A(f"ds_read_b64_tr_b16 v[{H+2*j}:{H+2*j+1}], v18 offset:{1024*j}")
    A("s_waitcnt lgkmcnt(4)")
    for r in range(16):
        A(f"v_add_f32 v{R+r}, v{R+r}, v{R+16+r}")
        A(f"v_add_f32 v{ACC+r}, v{ACC+r}, v{R+32+r}")
    for r in range(16):
        A(f"v_add_f32 v{ACC+r}, v{ACC+r}, v{R+r}")
    A("s_waitcnt lgkmcnt(0)")
    T = 160
    for n in range(8):
        A(f"v_lshlrev_b32 v{T+2*n}, 16, v{H+n}")
        A(f"v_and_b32 v{T+2*n+1}, 0xffff0000, v{H+n}")
    for r in range(16):
        A(f"v_add_f32 v{ACC+r}, v{ACC+r}, v{T+r}")
    O = 176
    for n in range(8):
        A(f"v_cvt_pk_bf16_f32 v{O+n}, v{ACC+2*n}, v{ACC+2*n+1}")
    A("s_nop 1")
    for jp in range(2):
        A(f"v_permlane32_swap_b32 v{O+4*jp}, v{O+4*jp+2}")
        A(f"v_permlane32_swap_b32 v{O+4*jp+1}, v{O+4*jp+3}")
    A("s_nop 1")
    A(f"buffer_store_dwordx4 v[{O}:{O+3}], v19, s[28:31], 0 offen")
    A(f"buffer_store_dwordx4 v[{O+4}:{O+7}], v19, s[28:31], 0 offen offset:32")
    A.label("K4_END")
    A("s_endpgm")
    return name, kernel_desc(name, 192, 224), f"grid=(256,1,1) block=(256,1,1) lds={K4_LDS}"
```

```python
MB = 1 << 20
KVR_OFF = 0;            KVR_SZ = 512 * 4096
XT_OFF  = 2 * MB;       XT_SZ  = 512 * 4096
STX_OFF = 4 * MB;       STX_SZ = 16384
XS_OFF  = 4 * MB + 65536;   XS_SZ = 131072
CS_OFF  = 4 * MB + 262144;  CS_SZ = 8 * 1792 * 4
HT_PITCH = 4224
HT_OFF  = 5 * MB;       HT_SZ = 512 * HT_PITCH
WIF_OFF = 8 * MB;       WIF_SZ = 56 * 32 * 1024
WOF_OFF = 10 * MB;      WOF_SZ = 16 * 56 * 1024
Z1C_OFF = 11 * MB;      Z1C_SZ = 64 * 28 * 2048
Z2F_OFF = 15 * MB;      Z2F_SZ = 28 * 128 * 1024
PF_OFF  = 19 * MB;      PF_SZ  = 64 * 56 * 1024
A_Q, A_K, A_V, A_SK, A_SSM, A_D, A_BX, A_WIN, A_WSP, A_BSP, A_WOUT, A_OUT, A_DBG, A_WS = [8 * i for i in range(14)]
```

```python
import sys, os
sys.path.insert(0, os.path.dirname(__file__))
from common import *
import k0, k1
mods = [k0.k0, k1.k1]
try:
    import k2; mods.append(k2.k2)
    import k3; mods.append(k3.k3)
    import k4; mods.append(k4.k4)
except ImportError as e:
    print("note:", e)

HEADER = open("sequential_preLN__ssm_conv_h3__mixer_gmlp__prompt.s.ref").read().split("; Override launch")[0]

def build(path, mods=mods):
    bodies, descs, launches = [], [], []
    for f in mods:
        A = Asm()
        name, desc, launch = f(A)
        msgs = lint(A.text(), name)
        for m in msgs: print("LINT", m)
        bodies.append(A.text()); descs.append(desc); launches.append(f"; @launch kernel={name} {launch}")
    out = HEADER + "\n".join(launches) + "\n"
    out += '.amdgcn_target "amdgcn-amd-amdhsa--gfx950"\n.text\n'
    out += "\n".join(bodies)
    out += '.section .rodata,"a"\n'
    for d in descs:
        out += ".p2align 6\n" + d
    open(path, "w").write(out)
    return out

if __name__ == "__main__":
    path = sys.argv[1] if len(sys.argv) > 1 else "sequential_preLN__ssm_conv_h3__mixer_gmlp__prompt.s"
    build(path)
    print("wrote", path, os.path.getsize(path))
```
